```python
import torch

def _softmax(x, axis=-1):
    return torch.softmax(x, dim=axis)
def _gelu(x):
    return torch.nn.functional.gelu(x, approximate="tanh")
def _silu(x):
    return torch.nn.functional.silu(x)
def _sigmoid(x):
    return torch.sigmoid(x)
def _layernorm(x, axis=-1, eps=1e-5):
    m = x.mean(dim=axis, keepdim=True)
    v = x.var(dim=axis, keepdim=True, unbiased=False)
    return (x - m) / torch.sqrt(v + eps)
def _scatter_add(tgt, idx, src, axis=0):
    return tgt.clone().index_add_(axis, idx, src)
def _segment_sum(src, seg, n):
    out = torch.zeros((n,) + src.shape[1:], dtype=src.dtype)
    return out.index_add_(0, seg, src)
def _pad(x, pw):
    flat = tuple(v for pair in reversed(pw) for v in pair)
    return torch.nn.functional.pad(x, flat)

kernel_name = 'interleave_layers__ssm_conv_h3__dense_activation_gelu__prompt'

def setup_inputs():

    _w = (lambda a: (lambda t: t.to(torch.bfloat16) if t.is_floating_point() else t)(torch.as_tensor(a)))
    def _A_setup():
        B, S, D = 1, 2048, 512
        ks = 4
        return {
            "q": _w((lambda *s: torch.randn(*s, dtype=torch.bfloat16) * 0.05)(B, S, D)),
            "k": _w((lambda *s: torch.randn(*s, dtype=torch.bfloat16) * 0.2)(B, S, D)),
            "v": _w((lambda *s: torch.randn(*s, dtype=torch.bfloat16) * 0.2)(B, S, D)),
            "shift_k": _w((lambda *s: torch.randn(*s, dtype=torch.bfloat16) * 0.2)(D, ks) * 0.5),
            "ssm_k": _w((lambda *s: torch.randn(*s, dtype=torch.bfloat16) * 0.4)(D, S) * (1.0 / S ** 0.5)),
            "ssm_D": _w((lambda *s: torch.randn(*s, dtype=torch.bfloat16) * 0.2)(D)),
        }
    _A_in = _A_setup()

    def _B_setup():
        B, S, D, F = 1, 2048, 512, 1376
        return {
            "x": _w((lambda *s: torch.randn(*s, dtype=torch.bfloat16) * 0.05)(B, S, D)),
            "w1": _w((lambda *s: torch.randn(*s, dtype=torch.bfloat16) * 0.4)(D, F) * (D ** -0.5)),
            "b1": _w((lambda *s: torch.randn(*s, dtype=torch.bfloat16) * 12.8)(F) * 0.01),
            "w2": _w((lambda *s: torch.randn(*s, dtype=torch.bfloat16) * 0.1)(F, D) * (F ** -0.5)),
            "b2": _w((lambda *s: torch.randn(*s, dtype=torch.bfloat16) * 0.8)(D) * 0.01),
        }
    _B_in = _B_setup()

    return {
        "A_q": _A_in["q"],
        "A_k": _A_in["k"],
        "A_v": _A_in["v"],
        "A_shift_k": _A_in["shift_k"],
        "A_ssm_k": _A_in["ssm_k"],
        "A_ssm_D": _A_in["ssm_D"],
        "B_x": _B_in["x"],
        "B_w1": _B_in["w1"],
        "B_b1": _B_in["b1"],
        "B_w2": _B_in["w2"],
        "B_b2": _B_in["b2"],
    }

def reference(A_q, A_k, A_v, A_shift_k, A_ssm_k, A_ssm_D, B_x, B_w1, B_b1, B_w2, B_b2):
    def _A_ref(q, k, v, shift_k, ssm_k, ssm_D):
        B, S, D = q.shape
        ks = shift_k.shape[-1]
        k_pad = _pad(k, ((0, 0), (ks - 1, 0), (0, 0)))
        k_shift = torch.zeros_like(k)
        for t in range(ks):
            k_shift = k_shift + k_pad[:, t:t + S, :] * shift_k[:, ks - 1 - t][None, None, :]
        kv = k_shift * v
        L = 2 * S
        kv_pad = _pad(kv, ((0, 0), (0, S), (0, 0)))
        kf_pad = _pad(ssm_k, ((0, 0), (0, S)))
        kv_f = (lambda x, axes=(-2,-1): torch.fft.rfft2(x.float(), dim=axes))(kv_pad[:, None, :, :], axes=(1, 2))
        kf_f = (lambda x, axes=(-2,-1): torch.fft.rfft2(x.float(), dim=axes))(kf_pad[:, None, :], axes=(1, 2))
        kf_f = (lambda x, *d: x.permute(*d))(kf_f, 1, 2, 0)
        y_f = kv_f * kf_f[None, :, :, :]
        y = (lambda x, s, axes=(-2,-1): torch.fft.irfft2(x, s=s, dim=axes).to(torch.bfloat16))(y_f, (1, L), axes=(1, 2))[:, 0, :S, :]
        y = y + kv * ssm_D[None, None, :]
        return q * y

    def _B_ref(x, w1, b1, w2, b2):
        h = torch.einsum("bsd,df->bsf", x, w1) + b1
        h = _gelu(h)
        return torch.einsum("bsf,fd->bsd", h, w2) + b2

    x = A_q
    x = x + _A_ref(_layernorm(x, axis=-1), A_k, A_v, A_shift_k, A_ssm_k, A_ssm_D)
    x = x + _B_ref(_layernorm(x, axis=-1), B_w1, B_b1, B_w2, B_b2)
    x = x + _A_ref(_layernorm(x, axis=-1), A_k, A_v, A_shift_k, A_ssm_k, A_ssm_D)
    x = x + _B_ref(_layernorm(x, axis=-1), B_w1, B_b1, B_w2, B_b2)
    return x
```

```python
import re


def v(i, n=1):
    return f"v{i}" if n == 1 else f"v[{i}:{i + n - 1}]"


def a(i, n=1):
    return f"a{i}" if n == 1 else f"a[{i}:{i + n - 1}]"


def s(i, n=1):
    return f"s{i}" if n == 1 else f"s[{i}:{i + n - 1}]"


_REG = re.compile(r"(?<![\w.])([vas])(?:(\d+)|\[(\d+):(\d+)\])(?![\w])")


def regs_of(op):
    out = set()
    op = op.strip()
    for m in _REG.finditer(op):
        k = m.group(1)
        if m.group(2) is not None:
            out.add((k, int(m.group(2))))
        else:
            for i in range(int(m.group(3)), int(m.group(4)) + 1):
                out.add((k, i))
    if re.search(r"\bvcc\b", op):
        out.add(("vcc", 0))
    if re.search(r"\bexec\b", op):
        out.add(("exec", 0))
    if re.search(r"\bm0\b", op):
        out.add(("m0", 0))
    return out


TRANS = ("v_exp_f32", "v_log_f32", "v_rcp_f32", "v_rsq_f32", "v_sqrt_f32", "v_sin_f32", "v_cos_f32")


class Ins:
    __slots__ = ("text", "mn", "ops", "rd", "wr", "kind", "passes", "srcc", "wide_store", "is_dpp", "states")

    def __init__(self, text):
        self.text = text
        t = text.split(";")[0].strip()
        self.kind = "other"
        self.rd, self.wr = set(), set()
        self.passes = 0
        self.srcc = set()
        self.wide_store = set()
        self.is_dpp = False
        self.states = 1
        if not t or t.endswith(":") or t.startswith("."):
            self.kind = "label" if t.endswith(":") else "dir"
            self.mn = ""
            self.states = 0
            return
        parts = t.split(None, 1)
        mn = parts[0]
        self.mn = mn
        rest = parts[1] if len(parts) > 1 else ""
        ops, depth, cur = [], 0, ""
        for ch in rest:
            if ch == "[":
                depth += 1
            if ch == "]":
                depth -= 1
            if ch == "," and depth == 0:
                ops.append(cur)
                cur = ""
            else:
                cur += ch
        if cur.strip():
            ops.append(cur)
        ops = [o.strip() for o in ops]
        self.ops = ops
        R = [regs_of(o.split(" ")[0]) if i == len(ops) - 1 else regs_of(o) for i, o in enumerate(ops)]
        allr = set().union(*R) if R else set()
        if mn == "s_nop":
            self.kind = "nop"
            self.states = int(ops[0], 0) + 1
        elif mn.startswith("v_mfma"):
            self.kind = "mfma"
            self.passes = 8 if "32x32x16" in mn else 4 if "16x16x32" in mn else None
            assert self.passes, mn
            self.wr = R[0]
            self.rd = R[1] | R[2] | R[3]
            self.srcc = R[3]
        elif mn.startswith("v_cmp"):
            self.kind = "valu"
            self.wr = R[0]
            self.rd = set().union(*R[1:])
            if mn.startswith("v_cmpx"):
                self.wr = self.wr | {("exec", 0)}
        elif mn.startswith("v_permlane"):
            self.kind = "permlane"
            self.wr = R[0] | R[1]
            self.rd = R[0] | R[1]
        elif mn.startswith("v_readfirstlane") or mn.startswith("v_readlane"):
            self.kind = "readlane"
            self.wr = R[0]
            self.rd = set().union(*R[1:])
        elif mn.startswith("v_"):
            self.kind = "trans" if mn.startswith(TRANS) else "valu"
            self.wr = R[0]
            self.rd = set().union(*R[1:]) if len(R) > 1 else set()
            if mn.startswith(("v_fmac", "v_dot2c", "v_pk_fmac", "v_writelane")):
                self.rd |= R[0]
            if mn.startswith(("v_add_co", "v_sub_co", "v_addc_co", "v_subb_co")):
                self.wr |= R[1]
            if "_dpp" in mn or " row_" in t or "quad_perm" in t:
                self.is_dpp = True
                self.rd |= R[0]
            if "_sdwa" in mn:
                self.rd |= R[0]
            if mn.startswith("v_dot2"):
                self.kind = "dot"
        elif mn.startswith(("buffer_load", "global_load")):
            self.kind = "vmem"
            if re.search(r"\blds\b", t) or "load_lds" in mn:
                self.rd = allr | {("m0", 0)}
                self.kind = "vmem_lds"
            else:
                self.wr = R[0]
                self.rd = set().union(*R[1:])
                if "d16" in mn:
                    self.rd |= R[0]
        elif mn.startswith(("buffer_store", "global_store", "buffer_atomic", "global_atomic")):
            self.kind = "vmem"
            self.rd = allr
            if "x4" in mn or "x3" in mn:
                self.wide_store = R[0] if mn.startswith("buffer") else R[1]
        elif mn.startswith("ds_read") or mn.startswith("ds_bpermute") or mn.startswith("ds_swizzle"):
            self.kind = "ds"
            self.wr = R[0]
            self.rd = set().union(*R[1:])
            if "d16" in mn:
                self.rd |= R[0]
        elif mn.startswith("ds_write"):
            self.kind = "ds"
            self.rd = allr
        elif mn.startswith(("s_cbranch", "s_branch")):
            self.kind = "branch"
        elif mn.startswith("s_"):
            self.kind = "salu"
            if mn.startswith(("s_cmp", "s_waitcnt", "s_barrier", "s_endpgm", "s_sleep", "s_setprio", "s_bitcmp")):
                self.rd = allr
            else:
                self.wr = R[0] if R else set()
                self.rd = set().union(*R[1:]) if len(R) > 1 else set()
                if "saveexec" in mn:
                    self.wr |= {("exec", 0)}
        elif mn.startswith(("buffer_inv", "buffer_wbl2")):
            self.kind = "vmem"
        else:
            raise ValueError("unknown instruction: " + text)


VALUISH = ("valu", "trans", "dot", "permlane", "readlane")


def vec(x):
    return {r for r in x if r[0] in ("v", "a")}


def sca(x):
    return {r for r in x if r[0] in ("s", "vcc")}


def need(p, c):
    n = 0
    pv = vec(p.wr)
    if p.kind in VALUISH:
        if c.kind == "mfma" and pv & c.rd:
            n = max(n, 2)
        if c.kind == "permlane" and pv & c.rd:
            n = max(n, 2)
        if c.is_dpp and pv & c.rd:
            n = max(n, 2)
        if c.kind == "readlane" and pv & c.rd:
            n = max(n, 1)
        ps = sca(p.wr)
        if ps:
            if c.kind in ("vmem", "vmem_lds") and ps & c.rd:
                n = max(n, 5)
            if c.kind in VALUISH and ps & c.rd:
                n = max(n, 4 if c.kind == "readlane" else 2)
            if c.kind == "salu" and ps & c.rd:
                n = max(n, 1)
        if ("exec", 0) in p.wr:
            if c.kind in ("mfma", "readlane", "permlane"):
                n = max(n, 4)
            if c.is_dpp:
                n = max(n, 5)
        if p.kind == "trans" and c.kind in VALUISH + ("mfma",) and c.kind != "trans" and pv & c.rd:
            n = max(n, 1 if c.kind != "mfma" else 2)
        if "_sdwa" in p.mn and c.kind in VALUISH and pv & (c.rd | c.wr):
            n = max(n, 1)
        if p.kind == "dot":
            if pv & (c.rd | c.wr):
                if c.kind == "dot" and c.mn == p.mn:
                    acc = regs_of(c.ops[0]) if c.mn.startswith("v_dot2c") else regs_of(c.ops[3])
                    ab = (regs_of(c.ops[1]) | regs_of(c.ops[2]))
                    if pv & ab:
                        n = max(n, 3)
                else:
                    n = max(n, 3)
    if p.kind == "mfma":
        d = p.wr
        if c.kind == "mfma":
            ab = c.rd - c.srcc if not (c.srcc & (regs_of(c.ops[1]) | regs_of(c.ops[2]))) else c.rd
            ab = regs_of(c.ops[1]) | regs_of(c.ops[2])
            if d & ab:
                n = max(n, {4: 8, 8: 12}[p.passes])
            if d & c.srcc:
                if d == c.srcc and p.passes == c.passes:
                    pass
                else:
                    n = max(n, {4: 6, 8: 10}[p.passes])
            elif d & c.wr:
                n = max(n, {4: 6, 8: 10}[p.passes])
        elif c.kind in VALUISH + ("vmem", "vmem_lds", "ds"):
            if d & (c.rd | c.wr):
                n = max(n, {4: 8, 8: 12}[p.passes])
        if c.kind in VALUISH and p.srcc & c.wr:
            n = max(n, {4: 3, 8: 7}[p.passes])
    if p.wide_store and (p.wide_store & c.wr):
        n = max(n, 2 if c.kind in VALUISH + ("mfma",) else 1)
    if p.kind == "salu" and ("m0", 0) in p.wr and c.kind == "vmem_lds":
        n = max(n, 1)
    if p.kind == "salu" and ("exec", 0) in p.wr:
        if c.is_dpp or c.kind == "permlane":
            n = max(n, 1)
    return n


class Prog:
    def __init__(self):
        self.lines = []

    def __call__(self, text):
        for ln in text.split("\n"):
            ln = ln.strip()
            if ln:
                self.lines.append(ln)

    def emit(self, lst):
        for x in lst:
            self(x)

    def autowait(self):
        res = []
        vm, lg = [], []
        smem = False
        for ln in self.lines:
            ins = Ins(ln)
            if ins.kind in ("label", "dir"):
                res.append(ln)
                continue
            if ins.mn == "s_waitcnt" and ";condwait" in ln:
                res.append(ln)
                continue
            if ins.mn == "s_waitcnt":
                m = re.search(r"vmcnt\((\d+)\)", ln)
                if m:
                    n = int(m.group(1))
                    keep, c = [], 0
                    for e in reversed(vm):
                        if c < n:
                            keep.append(e)
                            if e[1]:
                                c += 1
                    vm = keep[::-1]
                m = re.search(r"lgkmcnt\((\d+)\)", ln)
                if m:
                    n = int(m.group(1))
                    if n == 0:
                        lg, smem = [], False
                    elif not smem:
                        lg = lg[len(lg) - n:] if n < len(lg) else lg
                res.append(ln)
                continue
            touched = ins.rd | ins.wr
            w = []
            if ";nowait" not in ln:
                for q, name, mx in ((vm, "vmcnt", 63), (lg, "lgkmcnt", 15)):
                    idx = -1
                    for i, e in enumerate(q):
                        if e[0] & touched:
                            idx = i
                    if idx >= 0:
                        n = sum(1 for e in q[idx + 1:] if e[1])
                        if name == "lgkmcnt" and smem:
                            n = 0
                        n = min(n, mx)
                        w.append(f"{name}({n})")
                        if name == "lgkmcnt" and n == 0:
                            q.clear()
                            smem = False
                        else:
                            del q[:idx + 1]
            if w:
                res.append("s_waitcnt " + " ".join(w))
            res.append(ln)
            if ins.kind in ("vmem", "vmem_lds") and not ins.mn.startswith(("buffer_inv", "buffer_wbl2")):
                vm.append((set(ins.wr), ";cond" not in ln))
            elif ins.kind == "ds":
                lg.append((set(ins.wr), ";cond" not in ln))
            elif ins.mn.startswith(("s_load", "s_memtime", "s_memrealtime", "s_buffer_load")):
                smem = True
                lg.append((set(ins.wr), True))
            elif ins.mn == "s_endpgm":
                vm, lg, smem = [], [], False
        self.lines = res

    def finalize(self, lookback=24):
        self.autowait()
        out = []
        nnop = 0
        for ln in self.lines:
            ins = Ins(ln)
            if ins.kind in ("label", "dir"):
                out.append(ins)
                continue
            dist = 0
            pad = 0
            for p in reversed(out):
                if dist >= lookback:
                    break
                if p.kind in ("label", "dir"):
                    continue
                n = need(p, ins)
                if n > dist:
                    pad = max(pad, n - dist)
                dist += p.states
            while pad > 0:
                k = min(pad, 16)
                out.append(Ins(f"s_nop {k - 1}"))
                nnop += 1
                pad -= k
            out.append(ins)
        txt = []
        for i in out:
            if i.kind == "label":
                txt.append(i.text)
            else:
                txt.append("    " + i.text)
        return "\n".join(txt) + "\n", nnop


def interleave(main, fill, ratio=None, start=0):
    out = []
    n = len(main) - start
    k = 0
    for i, m in enumerate(main):
        out.append(m)
        if i >= start:
            tgt = len(fill) * (i - start + 1) // n if ratio is None else min(len(fill), int((i - start + 1) * ratio))
            while k < tgt:
                out.append(fill[k])
                k += 1
    out.extend(fill[k:])
    flat = []
    for x in out:
        if isinstance(x, (list, tuple)):
            flat.extend(x)
        else:
            flat.append(x)
    return flat
```

```python
from asmlib import *
from layout import *

K0_GRID = 256 + 128 + 88


def srd(P, d, ptr, nbytes):
    P(f"s_mov_b32 s{d}, s{ptr}")
    P(f"s_and_b32 s{d+1}, s{ptr+1}, 0xffff")
    P(f"s_mov_b32 s{d+2}, {nbytes:#x}")
    P(f"s_mov_b32 s{d+3}, 0x20000")


def gen_k0(P):
    P("prep_kernel:")
    P(f"s_cmp_ge_u32 s2, {K0_GRID}")
    P("s_cbranch_scc1 K0_END")
    P(f"s_load_dwordx4 s[40:43], s[0:1], {A_Q}")
    P(f"s_load_dwordx4 s[44:47], s[0:1], {A_V}")
    P(f"s_load_dwordx2 s[48:49], s[0:1], {B_W1}")
    P(f"s_load_dwordx2 s[50:51], s[0:1], {B_W2}")
    P(f"s_load_dwordx2 s[52:53], s[0:1], {D_WS}")
    P("v_lshrrev_b32 v1, 6, v0")
    P("v_and_b32 v2, 63, v0")
    P("v_readfirstlane_b32 s16, v1")
    P("s_waitcnt lgkmcnt(0)")
    srd(P, 4, 52, WS_BYTES)
    P("s_cmp_ge_u32 s2, 384")
    P("s_cbranch_scc1 K0_W2")
    P("s_cmp_ge_u32 s2, 256")
    P("s_cbranch_scc1 K0_W1")

    srd(P, 8, 42, 2048 * 1024)
    srd(P, 12, 44, 2048 * 1024)
    srd(P, 20, 40, 2048 * 1024)
    srd(P, 24, 46, 512 * 8)
    P("s_lshr_b32 s17, s2, 3")
    P("s_and_b32 s18, s2, 7")
    P("v_lshrrev_b32 v3, 3, v0")
    P("v_and_b32 v4, 7, v0")
    P("s_lshl_b32 s19, s17, 16")
    P("s_lshl_b32 s28, s18, 7")
    P("s_add_u32 s19, s19, s28")
    P("v_lshlrev_b32 v5, 13, v4")
    P("v_lshl_add_u32 v5, v3, 2, v5")
    P("v_add_u32 v5, s19, v5")
    P("v_add_u32 v6, 0x1000, v5")
    P("v_add_u32 v7, 0xfffff000, v5")
    K = 16
    Vv = 28
    Q = 36
    for j in range(3):
        P(f"buffer_load_dword v{K+j}, v7, s[8:11], 0 offen offset:{1024*(j+1)}")
    for j in range(8):
        P(f"buffer_load_dword v{K+3+j}, v{5+j//4}, s[8:11], 0 offen offset:{1024*(j%4)}")
    P("s_lshl_b32 s28, s18, 9")
    P("v_lshlrev_b32 v8, 4, v3")
    P("buffer_load_dwordx4 v[12:15], v8, s[24:27], s28 offen")
    for j in range(8):
        P(f"buffer_load_dword v{Vv+j}, v{5+j//4}, s[12:15], 0 offen offset:{1024*(j%4)}")
    for j in range(8):
        P(f"buffer_load_dword v{Q+j}, v{5+j//4}, s[20:23], 0 offen offset:{1024*(j%4)}")
    P("s_lshl_b32 s28, s2, 13")
    P("s_lshl_b32 s29, s16, 11")
    P("s_add_u32 s28, s28, s29")
    P("v_lshlrev_b32 v9, 4, v2")
    P("buffer_load_dwordx4 v[44:47], v9, s[20:23], s28 offen")
    P("buffer_load_dwordx4 v[48:51], v9, s[20:23], s28 offen offset:1024")
    P("v_mov_b32 v52, -1")
    P("v_mov_b32 v53, -1")
    P("v_mov_b32 v54, -1")
    P("v_mov_b32 v55, -1")
    P("s_mul_i32 s28, s2, 640")
    P(f"s_add_u32 s28, s28, {CLR:#x}")
    P("v_lshlrev_b32 v10, 4, v0")
    P("v_cmp_gt_u32 vcc, 40, v0")
    P("s_and_saveexec_b64 s[30:31], vcc")
    P("s_cbranch_execz K0_NOCLR")
    P("buffer_store_dwordx4 v[52:55], v10, s[4:7], s28 offen")
    P("K0_NOCLR:")
    P("s_mov_b64 exec, s[30:31]")
    P("s_lshl_b32 s28, s18, 18")
    P("s_lshl_b32 s29, s17, 7")
    P("s_add_u32 s28, s28, s29")
    P("v_lshlrev_b32 v11, 13, v3")
    P("v_lshl_add_u32 v11, v4, 4, v11")
    P(f"s_add_u32 s29, s28, {X0T:#x}")
    P(f"s_add_u32 s32, s28, {KVT + 4096:#x}")
    P(f"s_add_u32 s33, s29, 4096")
    if KVT:
        P(f"s_add_u32 s28, s28, {KVT:#x}")
    P("s_mov_b32 s34, 0xffff0000")
    P("s_waitcnt vmcnt(18)")
    SH = 56
    for ch in range(2):
        for j in range(2):
            P(f"v_lshlrev_b32 v{SH+4*ch+2*j}, 16, v{12+2*ch+j}")
            P(f"v_and_b32 v{SH+4*ch+2*j+1}, s34, v{12+2*ch+j}")
    KL, KH = 64, 76
    for j in range(11):
        P(f"v_lshlrev_b32 v{KL+j}, 16, v{K+j}")
        P(f"v_and_b32 v{KH+j}, s34, v{K+j}")
    O = 88
    for ch, KU in ((0, KL), (1, KH)):
        for t in range(8):
            P(f"v_mul_f32 v{O+8*ch+t}, v{KU+t}, v{SH+4*ch+3}")
        for tap in (2, 1, 0):
            for t in range(8):
                P(f"v_fmac_f32 v{O+8*ch+t}, v{KU+t+3-tap}, v{SH+4*ch+tap}")
    P("s_waitcnt vmcnt(10)")
    for t in range(8):
        P(f"v_lshlrev_b32 v{KL+t}, 16, v{Vv+t}")
        P(f"v_and_b32 v{KH+t}, s34, v{Vv+t}")
    for ch, KU in ((0, KL), (1, KH)):
        for t in range(8):
            P(f"v_mul_f32 v{O+8*ch+t}, v{O+8*ch+t}, v{KU+t}")
    for ch in range(2):
        for j in range(4):
            P(f"v_cvt_pk_bf16_f32 v{104+4*ch+j}, v{O+8*ch+7-2*j}, v{O+8*ch+6-2*j}")
    P("buffer_store_dwordx4 v[104:107], v11, s[4:7], s28 offen")
    P("buffer_store_dwordx4 v[108:111], v11, s[4:7], s32 offen")
    P("s_mov_b32 s35, 0x05040100")
    P("s_mov_b32 s36, 0x07060302")
    P("s_waitcnt vmcnt(4)")
    for j in range(4):
        P(f"v_perm_b32 v{112+j}, v{Q+2*j+1}, v{Q+2*j}, s35")
        P(f"v_perm_b32 v{116+j}, v{Q+2*j+1}, v{Q+2*j}, s36")
    P("buffer_store_dwordx4 v[112:115], v11, s[4:7], s29 offen")
    P("buffer_store_dwordx4 v[116:119], v11, s[4:7], s33 offen")
    P("s_waitcnt vmcnt(4)")
    P("s_mov_b32 s37, 0x3f803f80")
    for r in range(2):
        P(f"v_mov_b32 v{120+2*r}, 0")
        P(f"v_mov_b32 v{121+2*r}, 0")
    for j in range(4):
        for r in range(2):
            P(f"v_dot2_f32_bf16 v{120+2*r}, v{44+4*r+j}, s37, v{120+2*r}")
            P(f"v_dot2_f32_bf16 v{121+2*r}, v{44+4*r+j}, v{44+4*r+j}, v{121+2*r}")
    for mod in ("quad_perm:[1,0,3,2] row_mask:0xf", "quad_perm:[2,3,0,1] row_mask:0xf", "row_half_mirror row_mask:0xf",
                "row_mirror row_mask:0xf", "row_bcast:15 row_mask:0xa", "row_bcast:31 row_mask:0xc"):
        for i in range(4):
            P(f"v_add_f32_dpp v{120+i}, v{120+i}, v{120+i} {mod} bank_mask:0xf")
    P("s_mov_b32 s38, 0x3b000000")
    for r in range(2):
        S_, Q_ = 120 + 2 * r, 121 + 2 * r
        P(f"v_mul_f32 v{S_}, s38, v{S_}")
        P(f"v_mul_f32 v{Q_}, s38, v{Q_}")
        P(f"v_fma_f32 v{Q_}, -v{S_}, v{S_}, v{Q_}")
        P(f"v_max_f32 v{Q_}, 0, v{Q_}")
        P(f"v_add_f32 v{Q_}, 0x3727c5ac, v{Q_}")
        P(f"v_rsq_f32 v{124+2*r}, v{Q_}")
        P(f"v_mul_f32 v{125+2*r}, v{S_}, v{124+2*r}")
        P(f"v_sub_f32 v{125+2*r}, 0, v{125+2*r}")
    P("s_lshl_b32 s28, s2, 6")
    P("s_lshl_b32 s29, s16, 4")
    P("s_add_u32 s28, s28, s29")
    P(f"s_add_u32 s28, s28, {ST0:#x}")
    P("v_mov_b32 v10, 0")
    P("s_mov_b32 exec_lo, 0")
    P("s_mov_b32 exec_hi, 0x80000000")
    P("buffer_store_dwordx4 v[124:127], v10, s[4:7], s28 offen")
    P("s_endpgm")

    P("K0_W1:")
    srd(P, 8, 48, 512 * 2752)
    P("s_sub_u32 s17, s2, 256")
    P("s_and_b32 s18, s17, 7")
    P("s_lshr_b32 s17, s17, 3")
    P("v_lshrrev_b32 v3, 4, v2")
    P("v_and_b32 v4, 15, v2")
    P(f"v_mul_u32_u24 v5, {8*2752}, v3")
    P("v_lshl_add_u32 v5, v4, 1, v5")
    P("v_lshlrev_b32 v6, 4, v2")
    P(f"s_mul_i32 s19, s17, {32*2752}")
    P("s_mul_i32 s20, s18, 11")
    P("s_add_u32 s20, s20, s16")
    for k in range(3):
        B = 16 + 8 * k
        for p in range(8):
            P(f"v_mov_b32 v{B+p}, 0")
        P(f"s_add_u32 s21, s20, {4*k}")
        P(f"s_cmp_ge_u32 s21, 86")
        P(f"s_cbranch_scc1 K0_W1_SKIP{k}")
        P(f"s_lshl_b32 s22, s21, 5")
        P(f"s_add_u32 s22, s22, s19")
        for p in range(8):
            P(f"buffer_load_ushort v{B+p}, v5, s[8:11], s22 offen offset:{2752*(p%2)}")
            if p % 2 == 1 and p < 7:
                P(f"s_add_u32 s22, s22, {2*2752}")
        P(f"K0_W1_SKIP{k}:")
    P("s_waitcnt vmcnt(0)")
    for k in range(3):
        B = 16 + 8 * k
        for j in range(4):
            P(f"v_lshl_or_b32 v{40+4*k+j}, v{B+2*j+1}, 16, v{B+2*j}")
        P(f"s_add_u32 s21, s16, {4*k}")
        if k == 2:
            P("s_cmp_ge_u32 s21, 11")
            P("s_cbranch_scc1 K0_END")
        P("s_mul_i32 s22, s21, 11")
        P("s_lshr_b32 s22, s22, 5")
        P("s_lshl_b32 s23, s22, 2")
        P("s_sub_u32 s23, s17, s23")
        P("s_and_b32 s23, s23, 15")
        P("s_mul_i32 s24, s18, 12")
        P("s_add_u32 s24, s24, s21")
        P("s_lshl_b32 s24, s24, 4")
        P("s_add_u32 s24, s24, s23")
        P("s_lshl_b32 s24, s24, 10")
        P(f"s_add_u32 s24, s24, {W1F:#x}")
        P(f"buffer_store_dwordx4 v[{40+4*k}:{43+4*k}], v6, s[4:7], s24 offen")
    P("s_endpgm")

    P("K0_W2:")
    srd(P, 8, 50, 1376 * 1024)
    P("s_sub_u32 s17, s2, 384")
    P("v_bfe_u32 v3, v2, 3, 2")
    P("v_bfe_u32 v4, v2, 2, 1")
    P("v_and_b32 v5, 3, v2")
    P("v_lshl_add_u32 v5, v3, 2, v5")
    P("v_lshl_add_u32 v5, v4, 4, v5")
    P("v_lshlrev_b32 v5, 1, v5")
    P("v_lshrrev_b32 v3, 5, v2")
    P("v_lshl_add_u32 v5, v3, 12, v5")
    P("v_lshlrev_b32 v6, 4, v2")
    for k in range(4):
        for p in range(8):
            P(f"v_mov_b32 v{16+8*k+p}, 0")
    P("s_cmp_ge_u32 s17, 86")
    P("s_cbranch_scc1 K0_W2_SKIP")
    P("s_lshl_b32 s19, s17, 14")
    P("s_lshl_b32 s20, s16, 8")
    P("s_add_u32 s19, s19, s20")
    P("s_add_u32 s20, s19, 8192")
    for k in range(4):
        for p in range(8):
            P(f"buffer_load_ushort v{16+8*k+p}, v5, s[8:11], s{19+p//4} offen offset:{1024*(p%4)+64*k}")
    P("K0_W2_SKIP:")
    P("s_mul_i32 s21, s17, 745")
    P("s_lshr_b32 s21, s21, 14")
    P("s_mul_i32 s22, s21, 22")
    P("s_sub_u32 s22, s17, s22")
    P("s_lshl_b32 s23, s16, 3")
    P("s_add_u32 s23, s23, s21")
    P("s_mul_i32 s23, s23, 22")
    P("s_add_u32 s23, s23, s22")
    P("s_lshl_b32 s23, s23, 11")
    P(f"s_add_u32 s23, s23, {W2F:#x}")
    P(f"s_add_u32 s24, s23, {4*22*2048}")
    P("s_waitcnt vmcnt(0)")
    for k in range(4):
        B = 16 + 8 * k
        for j in range(4):
            P(f"v_lshl_or_b32 v{48+4*k+j}, v{B+2*j+1}, 16, v{B+2*j}")
        P(f"buffer_store_dwordx4 v[{48+4*k}:{51+4*k}], v6, s[4:7], s{23+k//2} offen offset:{1024*(k%2)}")
    P("K0_END:")
    P("s_endpgm")
```

```python
import struct
from asmlib import *
from layout import *
from k0 import srd


def f2u(x):
    return struct.unpack("<I", struct.pack("<f", x))[0]


HC = 0
HCS = 4160
UC = 8 * HCS
UCS = 4608
RC = UC + 2 * UCS
XI = 0
XRS = 1056
RED = 64 * XRS
REDS = 272
REDW = 32 * REDS
REDH = 4 * REDW
STP = RED + 2 * REDH
BC = STP + 2048
B2L = BC + 1536
K1_LDS = B2L + 256

WS = 4
SA = 8
SD = 20
SB1 = 24
SB2 = 28
sW, sRB, sG, sHF = 16, 17, 18, 19
sMASK, sONES, sC0, sINV = 56, 57, 58, 59
sSPIN = 80
sT = 32
STAMPS = list(range(62, 80)) + list(range(81, 102))

SPIN_MAX = 1 << 20

def W1(n, slot):
    return a((n * 16 + slot) * 4, 4)


def W2(sidx, dtl):
    k = sidx * 2 + dtl
    if k < 16:
        return a(192 + 4 * k, 4)
    return v(144 + 4 * (k - 16), 4)


class K1:
    def __init__(self, P, diag=False):
        self.P = P
        self.diag = diag
        self.nst = 0
        self.names = []
        self.nlab = 0

    def stamp(self, name=""):
        if not self.diag:
            return
        P = self.P
        P("s_memrealtime s[60:61]")
        P("s_waitcnt lgkmcnt(0)")
        P(f"s_mov_b32 s{STAMPS[self.nst]}, s60")
        self.names.append(name)
        self.nst += 1

    def lab(self, base):
        self.nlab += 1
        return f"K1_{base}{self.nlab}"

    def poll(self, vaddr, soff, dst, nd, extra="", cond=False):
        P = self.P
        L = self.lab("POLL")
        D = self.lab("PDONE")
        P(f"s_mov_b32 s{sSPIN}, {SPIN_MAX}")
        P(f"{L}:")
        op = {1: "dword", 2: "dwordx2", 4: "dwordx4"}[nd]
        P(f"buffer_load_{op} {v(dst, nd)}, v{vaddr}, s[{WS}:{WS+3}], s{soff} offen {extra} sc1" + (" ;cond" if cond else ""))
        P("s_waitcnt vmcnt(0)" + (" ;condwait" if cond else ""))
        t = dst
        if nd == 2:
            t = dst + 2
            P(f"v_max_u32 v{t}, v{dst}, v{dst+1} ;nowait")
        if nd == 4:
            t = dst + 4
            P(f"v_max3_u32 v{t}, v{dst}, v{dst+1}, v{dst+2} ;nowait")
            P(f"v_max_u32 v{t}, v{t}, v{dst+3} ;nowait")
        P(f"v_cmp_eq_u32 vcc, -1, v{t} ;nowait")
        P("s_and_b64 vcc, exec, vcc")
        P(f"s_cbranch_vccz {D}")
        P(f"s_sub_u32 s{sSPIN}, s{sSPIN}, 1")
        P(f"s_cmp_lg_u32 s{sSPIN}, 0")
        P(f"s_cbranch_scc1 {L}")
        P(f"{D}:")

    def set_flag(self, soff, vz):
        P = self.P
        P("s_mov_b64 exec, 1")
        P(f"buffer_store_dword v{vz}, v{vz}, s[{WS}:{WS+3}], s{soff} offen sc1")
        P("s_mov_b64 exec, -1")

    def gen(self):
        P = self.P
        P("main_kernel:")
        P("s_cmp_ge_u32 s2, 256")
        P("s_cbranch_scc1 K1_END")
        P(f"s_load_dwordx4 s[40:43], s[0:1], {A_SSMK}")
        P(f"s_load_dwordx2 s[44:45], s[0:1], {B_B1}")
        P(f"s_load_dwordx4 s[48:51], s[0:1], {B_B2}")
        P(f"s_load_dwordx2 s[52:53], s[0:1], {D_WS}")
        P("v_lshrrev_b32 v2, 6, v0")
        P("v_and_b32 v1, 63, v0")
        P(f"v_readfirstlane_b32 s{sW}, v2")
        P(f"s_and_b32 s{sRB}, s2, 7")
        P(f"s_lshr_b32 s{sT}, s2, 6")
        P(f"s_lshl_b32 s{sT}, s{sT}, 3")
        P(f"s_add_u32 s{sRB}, s{sRB}, s{sT}")
        P(f"s_lshr_b32 s{sG}, s2, 3")
        P(f"s_and_b32 s{sG}, s{sG}, 7")
        P(f"s_and_b32 s{sHF}, s{sW}, 1")
        P(f"s_mov_b32 s{sMASK}, 0xffff0000")
        P(f"s_mov_b32 s{sONES}, 0x3f803f80")
        P(f"s_mov_b32 s{sC0}, {f2u(-2.0 * 0.7978845608028654 * 1.4426950408889634):#x}")
        P(f"s_mov_b32 s{sINV}, 0x3b000000")
        P("s_waitcnt lgkmcnt(0)")
        srd(P, WS, 52, WS_BYTES)
        srd(P, SA, 40, 512 * 4096)
        srd(P, SD, 42, 1024)
        srd(P, SB1, 44, 2752)
        srd(P, SB2, 48, 1024)
        self.stamp("gen.1")
        self.conv()
        srd(P, SA, 50, 2048 * 1024)
        self.mlp_setup()
        self.x1_handoff()
        for layer in range(2):
            self.g1_setup(layer)
            for hf in range(2):
                self.g1(layer, hf)
            for hf in range(2):
                self.g2(layer, hf)
                self.rows(layer, hf)
            if layer == 0:
                for hf in range(2):
                    self.x3_fetch(hf)
                P("s_waitcnt vmcnt(0)")
                P("s_barrier")
                self.stamp("gen.2")
        if self.diag:
            P("s_waitcnt vmcnt(0)")
            self.stamp("gen.3")
            P(f"s_lshl_b32 s{sT}, s2, 2")
            P(f"s_add_u32 s{sT}, s{sT}, s{sW}")
            P(f"s_lshl_b32 s{sT}, s{sT}, 8")
            P(f"s_add_u32 s{sT}, s{sT}, {DBG:#x}")
            P("v_mov_b32 v2, 0")
            P("s_mov_b64 exec, 1")
            for i in range(self.nst):
                P(f"v_mov_b32 v3, s{STAMPS[i]}")
                P(f"buffer_store_dword v3, v2, s[{WS}:{WS+3}], s{sT} offen offset:{4*i}")
        P("K1_END:")
        P("s_endpgm")

    def wloads(self):
        L = []
        for k in range(48):
            if k and k % 4 == 0:
                L.append([f"s_add_u32 s33, s33, 4096",
                          f"buffer_load_dwordx4 {a(4*k,4)}, v11, s[{WS}:{WS+3}], s33 offen"])
            else:
                L.append(f"buffer_load_dwordx4 {a(4*k,4)}, v11, s[{WS}:{WS+3}], s33 offen offset:{1024*(k%4)}")
        for k in range(44):
            dst = W2(k // 2, k % 2)
            if k and k % 4 == 0:
                L.append([f"s_add_u32 s34, s34, 4096",
                          f"buffer_load_dwordx4 {dst}, v11, s[{WS}:{WS+3}], s34 offen"])
            else:
                L.append(f"buffer_load_dwordx4 {dst}, v11, s[{WS}:{WS+3}], s34 offen offset:{1024*(k%4)}")
        return L

    def conv(self):
        P = self.P
        P("v_lshlrev_b32 v2, 5, v0")
        P("v_subrev_u32 v3, 8, v2")
        P("v_max_i32 v3, 0, v3")
        P(f"s_lshl_b32 s{sT}, s2, 13")
        P(f"buffer_load_dwordx4 v[34:37], v2, s[{SA}:{SA+3}], s{sT} offen")
        P(f"buffer_load_dwordx4 v[38:41], v2, s[{SA}:{SA+3}], s{sT} offen offset:16")
        P(f"buffer_load_dwordx2 v[32:33], v3, s[{SA}:{SA+3}], s{sT} offen")
        P("v_lshlrev_b32 v11, 4, v1")
        P(f"s_lshl_b32 s33, s{sW}, 11")
        P(f"s_add_u32 s33, s33, s{sT}")
        if KVT:
            P(f"s_add_u32 s35, s33, {KVT:#x}")
        else:
            P("s_mov_b32 s35, s33")
        P(f"s_lshr_b32 s36, s{sW}, 1")
        P(f"s_mul_i32 s37, s36, {UCS}")
        P(f"s_add_u32 s37, s37, {UC}")
        P(f"s_lshl_b32 s38, s{sHF}, 11")
        P(f"s_add_u32 s38, s38, s37")
        P(f"s_add_u32 m0, s38, 512")
        P(f"buffer_load_dwordx4 v11, s[{WS}:{WS+3}], s35 offen lds")
        P(f"buffer_load_dwordx4 v11, s[{WS}:{WS+3}], s35 offen offset:1024 lds")
        P("v_and_b32 v4, 15, v1")
        P("v_lshrrev_b32 v5, 4, v1")
        P("v_lshlrev_b32 v6, 5, v4")
        P("v_lshl_add_u32 v6, v5, 3, v6")
        P(f"s_add_u32 s35, s33, {X0T:#x}")
        for k in range(4):
            P(f"buffer_load_dwordx2 v[{66+2*k}:{67+2*k}], v6, s[{WS}:{WS+3}], s35 offen offset:{512*k}")
        P("v_lshlrev_b32 v7, 2, v6")
        P(f"s_lshl_b32 s35, s{sHF}, 13")
        P(f"s_add_u32 s35, s35, {ST0:#x}")
        P(f"s_add_u32 s38, s35, 4096")
        for k in range(4):
            so = 35 if k < 2 else 38
            for j in range(2):
                P(f"buffer_load_dwordx4 v[{74+8*k+4*j}:{77+8*k+4*j}], v7, s[{WS}:{WS+3}], s{so} offen offset:{2048*(k%2)+16*j}")
        P(f"s_lshl_b32 s35, s2, 2")
        P(f"s_lshl_b32 s38, s36, 1")
        P(f"s_add_u32 s35, s35, s38")
        P("v_mov_b32 v8, 0")
        P(f"buffer_load_ushort v106, v8, s[{SD}:{SD+3}], s35 offen")
        P(f"s_lshl_b32 s38, s{sG}, 2")
        P(f"s_add_u32 s38, s38, s{sW}")
        P(f"s_mul_i32 s33, s38, {48*1024}")
        P(f"s_add_u32 s33, s33, {W1F:#x}")
        P(f"s_mul_i32 s34, s38, {44*1024}")
        P(f"s_add_u32 s34, s34, {W2F:#x}")
        wl = self.wloads()
        pre = 40
        P.emit(interleave(wl[:pre], []))
        self.wl_rest_v = wl[64:]
        wl_mid = wl[pre:64]
        for i in range(4):
            P(f"v_mov_b32 v{108+i}, 0")
        P("v_lshrrev_b32 v9, 1, v0")
        P(f"v_mul_u32_u24 v9, {HCS}, v9")
        P("v_and_b32 v10, 1, v0")
        P("v_lshl_add_u32 v9, v10, 4, v9")
        P("v_cmp_gt_u32 vcc, 16, v0")
        P("s_and_saveexec_b64 s[38:39], vcc")
        P("ds_write_b128 v9, v[108:111] offset:%d ;cond" % HC)
        P("s_mov_b64 exec, s[38:39]")
        P("v_and_b32 v9, 15, v1")
        P("v_lshlrev_b32 v9, 4, v9")
        P(f"s_lshl_b32 s38, s{sHF}, 8")
        P(f"s_add_u32 s38, s38, s37")
        P("v_add_u32 v9, s38, v9")
        P("ds_write_b128 v9, v[108:111]")
        P("v_and_b32 v9, 127, v0")
        P("v_cmp_eq_u32 vcc, 0, v9")
        P("v_lshrrev_b32 v10, 7, v0")
        P(f"v_mul_u32_u24 v10, {4*HCS}, v10")
        P("v_lshl_add_u32 v10, v9, 5, v10")
        P("v_cndmask_b32 v32, v32, v108, vcc")
        P("v_cndmask_b32 v33, v33, v108, vcc")
        d = lambda i: 34 + i
        P(f"ds_write_b128 v10, v[34:37] offset:{HC+32}")
        P(f"ds_write_b128 v10, v[38:41] offset:{HC+48}")
        for i in range(8):
            P(f"v_alignbit_b32 v{42+i}, v{d(i)}, v{d(i-1)}, 16")
        P(f"ds_write_b128 v10, v[42:45] offset:{HC+HCS+32}")
        P(f"ds_write_b128 v10, v[46:49] offset:{HC+HCS+48}")
        for i in range(8):
            P(f"v_mov_b32 v{58+i}, v{d(i-1)}")
        P(f"ds_write_b128 v10, v[58:61] offset:{HC+2*HCS+32}")
        P(f"ds_write_b128 v10, v[62:65] offset:{HC+2*HCS+48}")
        for i in range(8):
            P(f"v_alignbit_b32 v{50+i}, v{d(i-1)}, v{d(i-2)}, 16")
        P(f"ds_write_b128 v10, v[50:53] offset:{HC+3*HCS+32}")
        P(f"ds_write_b128 v10, v[54:57] offset:{HC+3*HCS+48}")
        P("v_lshlrev_b32 v12, 5, v4")
        P("v_lshl_add_u32 v12, v5, 4, v12")
        P(f"s_lshl_b32 s38, s{sHF}, 8")
        P(f"s_sub_u32 s39, s37, s38")
        P(f"s_add_u32 s39, s39, {32+256}")
        P("v_add_u32 v12, s39, v12")
        P("v_sub_u32 v9, 3, v4")
        P("v_and_b32 v9, 3, v9")
        P(f"v_mul_u32_u24 v13, {HCS+2}, v9")
        P("v_lshl_add_u32 v13, v4, 1, v13")
        P("v_lshlrev_b32 v9, 4, v5")
        P("v_sub_u32 v13, v13, v9")
        P(f"s_mul_i32 s39, s36, {4*HCS}")
        P(f"s_add_u32 s39, s39, s38")
        P(f"s_add_u32 s39, s39, {HC+50}")
        P("v_add_u32 v13, s39, v13")
        P(f"s_waitcnt vmcnt({13+pre}) lgkmcnt(0)")
        P("s_barrier")
        self.stamp("conv.1")
        ACC = 108
        BB = [140, 172]
        AR = 204

        def rdB(rho, b):
            return f"ds_read_b128 {v(BB[rho%2]+4*b,4)}, v12 offset:{512*b+64*(3-rho)}"

        def rdA(idx):
            rho, aa = divmod(idx, 8)
            r = AR + 4 * (idx % 4)
            off = 64 * rho + 512 * aa
            return [f"ds_read_b64 {v(r,2)}, v13 offset:{off}", f"ds_read_b64 {v(r+2,2)}, v13 offset:{off+8}"]

        P.emit(rdA(0))
        for b in range(8):
            P(rdB(0, b))
        P.emit(rdA(1))
        P.emit(rdA(2))
        wl_it = iter(wl_mid)
        for rho in range(4):
            for aa in range(8):
                idx = rho * 8 + aa
                for b in range(8 - aa):
                    c = aa + b
                    src = "0" if (rho == 0 and aa == 0) else v(ACC + 4 * c, 4)
                    P(f"v_mfma_f32_16x16x32_bf16 {v(ACC+4*c,4)}, {v(AR+4*(idx%4),4)}, {v(BB[rho%2]+4*b,4)}, {src}")
                    if b == 0:
                        if idx + 3 < 32:
                            P.emit(rdA(idx + 3))
                        if rho < 3:
                            P(rdB(rho + 1, aa))
                    if b == 1:
                        x = next(wl_it, None)
                        if x is not None:
                            P.emit([x] if isinstance(x, str) else x)
        for x in wl_it:
            P.emit([x] if isinstance(x, str) else x)
        self.stamp("rdA.1")
        P(f"s_lshl_b32 s38, s{sW}, 12")
        P(f"s_add_u32 s38, s38, {RC}")
        P("v_add_u32 v9, s38, v11")
        P(f"s_xor_b32 s39, s{sW}, 1")
        P(f"s_lshl_b32 s39, s39, 12")
        P(f"s_add_u32 s39, s39, {RC}")
        P("v_add_u32 v10, s39, v11")
        P("v_lshlrev_b32 v14, 5, v4")
        P("v_lshrrev_b32 v15, 1, v5")
        P("v_lshl_add_u32 v14, v15, 4, v14")
        P("v_and_b32 v15, 1, v5")
        P("v_lshlrev_b32 v15, 3, v15")
        P("v_sub_u32 v14, v14, v15")
        P(f"s_lshl_b32 s38, s{sHF}, 11")
        P(f"s_add_u32 s38, s38, s37")
        P(f"s_add_u32 s38, s38, {512+8}")
        P("v_add_u32 v14, s38, v14")
        for k in range(4):
            P(f"ds_read_b64 v[{140+2*k}:{141+2*k}], v14 offset:{512*k}")
        L1, L2, L3, L4 = self.lab("R"), self.lab("R"), self.lab("R"), self.lab("R")
        P("s_nop 7")
        P(f"s_cmp_eq_u32 s{sHF}, 0")
        P(f"s_cbranch_scc0 {L1}")
        for k in range(4):
            P(f"ds_write_b128 v9, {v(ACC+16+4*k,4)} offset:{1024*k} ;cond")
        P(f"s_branch {L2}")
        P(f"{L1}:")
        for k in range(4):
            P(f"ds_write_b128 v9, {v(ACC+4*k,4)} offset:{1024*k} ;cond")
        P("s_waitcnt lgkmcnt(0) ;condwait")
        for k in range(16):
            P(f"v_mov_b32 v{ACC+k}, v{ACC+16+k}")
        P(f"{L2}:")
        P("s_waitcnt lgkmcnt(0)")
        P("s_barrier")
        for k in range(4):
            P(f"ds_read_b128 {v(148+4*k,4)}, v10 offset:{1024*k}")
        P("v_lshlrev_b32 v106, 16, v106")
        for k in range(16):
            P(f"v_add_f32 v{ACC+k}, v{ACC+k}, v{148+k}")
        YP, XP = 32, 40
        T = 48
        for k in range(4):
            ulo, uhi = 140 + 2 * k, 141 + 2 * k
            P(f"v_and_b32 v{T}, s{sMASK}, v{uhi}")
            P(f"v_lshlrev_b32 v{T+1}, 16, v{uhi}")
            P(f"v_and_b32 v{T+2}, s{sMASK}, v{ulo}")
            P(f"v_lshlrev_b32 v{T+3}, 16, v{ulo}")
            for e in range(4):
                P(f"v_fmac_f32 v{ACC+4*k+e}, v{T+e}, v106")
            P(f"v_cvt_pk_bf16_f32 v{YP+2*k}, v{ACC+4*k}, v{ACC+4*k+1}")
            P(f"v_cvt_pk_bf16_f32 v{YP+2*k+1}, v{ACC+4*k+2}, v{ACC+4*k+3}")
            for j in range(2):
                P(f"v_lshlrev_b32 v{T+2*j}, 16, v{YP+2*k+j}")
                P(f"v_and_b32 v{T+2*j+1}, s{sMASK}, v{YP+2*k+j}")
                P(f"v_lshlrev_b32 v{T+4+2*j}, 16, v{66+2*k+j}")
                P(f"v_and_b32 v{T+4+2*j+1}, s{sMASK}, v{66+2*k+j}")
            for e in range(4):
                P(f"v_fma_f32 v{T+8+e}, v{T+4+e}, v{74+8*k+2*e}, v{74+8*k+2*e+1}")
            for e in range(4):
                P(f"v_fmac_f32 v{T+4+e}, v{T+8+e}, v{T+e}")
            P(f"v_cvt_pk_bf16_f32 v{XP+2*k}, v{T+4}, v{T+5}")
            P(f"v_cvt_pk_bf16_f32 v{XP+2*k+1}, v{T+6}, v{T+7}")
        P("v_and_b32 v9, 1, v5")
        P("v_lshlrev_b32 v9, 9, v9")
        P("v_lshl_add_u32 v9, v4, 5, v9")
        P("v_lshrrev_b32 v10, 1, v5")
        P("v_lshl_add_u32 v9, v10, 4, v9")
        P(f"s_lshl_b32 s35, s2, 13")
        P(f"s_lshl_b32 s38, s{sW}, 11")
        P(f"s_add_u32 s35, s35, s38")
        P(f"s_add_u32 s38, s35, {YT:#x}")
        P(f"s_add_u32 s35, s35, {X1T:#x}")
        for base, so in ((XP, 35), (YP, 38)):
            for pr in range(2):
                r = base + 4 * pr
                P(f"v_permlane16_swap_b32 v{r}, v{r+2}")
                P(f"v_permlane16_swap_b32 v{r+1}, v{r+3}")
                P(f"buffer_store_dwordx4 {v(r,4)}, v9, s[{WS}:{WS+3}], s{so} offen offset:{1024*pr} sc1")
        self.stamp("rdA.2")
        P("s_waitcnt vmcnt(0)")
        P("s_barrier")
        P("v_mov_b32 v8, 0")
        P(f"s_lshl_b32 s35, s2, 2")
        P(f"s_add_u32 s35, s35, {FX1:#x}")
        L = self.lab("F")
        P(f"s_cmp_eq_u32 s{sW}, 0")
        P(f"s_cbranch_scc0 {L}")
        P("s_mov_b64 exec, 1")
        P(f"buffer_store_dword v8, v8, s[{WS}:{WS+3}], s35 offen sc1 ;cond")
        P("s_mov_b64 exec, -1")
        P(f"{L}:")
        self.stamp("rdA.3")

    def mlp_setup(self):
        P = self.P
        P.emit(interleave(self.wl_rest_v, []))
        P("v_lshrrev_b32 v14, 4, v1")
        P(f"s_mul_i32 s35, s{sG}, 11")
        P(f"s_mul_i32 s36, s{sW}, 3")
        P(f"s_add_u32 s35, s35, s36")
        P(f"s_lshl_b32 s36, s35, 5")
        P("v_lshlrev_b32 v15, 3, v14")
        P(f"v_add_u32 v15, s36, v15")
        for n in range(3):
            P(f"buffer_load_dwordx2 v[{32+2*n}:{33+2*n}], v15, s[{SB1}:{SB1+3}], 0 offen offset:{32*n}")
        P(f"s_lshl_b32 s36, s{sG}, 7")
        P("v_lshlrev_b32 v15, 1, v1")
        P(f"buffer_load_ushort v38, v15, s[{SB2}:{SB2+3}], s36 offen")
        for i in range(4):
            P(f"v_mov_b32 v{40+i}, s{sONES}")
        for slot in range(16):
            for n in range(3):
                src = "0" if slot == 0 else v(44 + 4 * n, 4)
                P(f"v_mfma_f32_16x16x32_bf16 {v(44+4*n,4)}, {W1(n,slot)}, v[40:43], {src}")
        P("v_and_b32 v2, 15, v1")
        P("v_bfe_u32 v15, v1, 4, 1")
        P("v_lshl_add_u32 v2, v15, 5, v2")
        P("v_lshrrev_b32 v15, 5, v1")
        P("v_lshl_add_u32 v2, v15, 4, v2")
        P("v_lshlrev_b32 v2, 4, v2")
        P("v_and_b32 v3, 31, v1")
        P(f"v_mul_u32_u24 v3, {REDS}, v3")
        P("v_lshl_add_u32 v3, v15, 6, v3")
        P(f"s_mul_i32 s36, s{sW}, {REDW}")
        P(f"s_add_u32 s36, s36, {RED}")
        P("v_add_u32 v3, s36, v3")
        P("v_lshrrev_b32 v15, 3, v1")
        P(f"s_lshl_b32 s36, s{sW}, 3")
        P("v_add_u32 v15, s36, v15")
        P(f"v_mul_u32_u24 v4, {REDS}, v15")
        P("v_and_b32 v14, 7, v1")
        P("v_lshl_add_u32 v4, v14, 5, v4")
        P(f"v_add_u32 v4, {RED}, v4")
        P("v_lshlrev_b32 v5, 3, v15")
        P("v_lshl_add_u32 v6, v14, 8, v5")
        P("v_lshlrev_b32 v7, 10, v15")
        P("v_lshl_add_u32 v7, v14, 4, v7")
        P("v_and_b32 v10, 15, v1")
        P("v_lshlrev_b32 v10, 3, v10")
        P(f"v_add_u32 v10, {STP}, v10")
        P(f"s_lshl_b32 s36, s{sW}, 9")
        P("v_add_u32 v9, s36, v10")
        P("v_lshrrev_b32 v12, 4, v1")
        P("v_lshlrev_b32 v12, 5, v12")
        P(f"s_mul_i32 s36, s{sW}, 384")
        P(f"s_add_u32 s36, s36, {BC}")
        P("v_add_u32 v12, s36, v12")
        P(f"v_mov_b32 v13, {f2u(-2.0 * 0.7978845608028654 * 1.4426950408889634 * 0.044715):#x}")
        for n in range(3):
            for j in range(2):
                P(f"v_lshlrev_b32 v{56+2*j}, 16, v{32+2*n+j}")
                P(f"v_and_b32 v{57+2*j}, s{sMASK}, v{32+2*n+j}")
            P(f"ds_write_b128 v12, v[56:59] offset:{128*n}")
            P(f"ds_write_b128 v12, {v(44+4*n,4)} offset:{128*n+16}")
        P("v_lshlrev_b32 v38, 16, v38")
        P("v_lshlrev_b32 v15, 2, v1")
        P(f"v_add_u32 v15, {B2L}, v15")
        P(f"ds_write_b32 v15, v38")

    def x1_handoff(self):
        P = self.P
        L = self.lab("X")
        P(f"s_mov_b32 s35, {FX1:#x}")
        P(f"s_cmp_eq_u32 s{sW}, 0")
        P(f"s_cbranch_scc0 {L}")
        self.poll(11, 35, 32, 4, cond=True)
        P(f"{L}:")
        P("s_waitcnt lgkmcnt(0)")
        P("s_barrier")
        self.stamp("x1_handoff.1")
        P("v_lshrrev_b32 v32, 3, v1")
        P("v_bfe_u32 v33, v1, 4, 1")
        P("v_bfe_u32 v34, v1, 1, 2")
        P("v_xor_b32 v33, v33, v34")
        P("v_and_b32 v34, 1, v1")
        P("v_lshl_add_u32 v33, v33, 1, v34")
        P("v_lshlrev_b32 v33, 4, v33")
        P("v_lshl_add_u32 v32, v32, 12, v33")
        P("v_xor_b32 v33, 64, v32")
        P(f"s_lshl_b32 s35, s{sW}, 19")
        P(f"s_lshl_b32 s36, s{sRB}, 7")
        P(f"s_add_u32 s35, s35, s36")
        P(f"s_add_u32 s35, s35, {X1T:#x}")
        P(f"s_lshl_b32 s37, s{sW}, 14")
        if XI:
            P(f"s_add_u32 s37, s37, {XI}")
        for k in range(16):
            P(f"s_add_u32 m0, s37, {1024*k}")
            P(f"buffer_load_dwordx4 v{32+k%2}, s[{WS}:{WS+3}], s35 offen sc1 lds")
            if k < 15:
                P(f"s_add_u32 s35, s35, 32768")
        P("v_and_b32 v34, 7, v1")
        P("v_lshlrev_b32 v34, 15, v34")
        P("v_lshrrev_b32 v35, 2, v5")
        P("v_add_u32 v34, v34, v35")
        P(f"s_lshl_b32 s35, s{sG}, 18")
        P(f"s_add_u32 s35, s35, s36")
        P(f"s_add_u32 s38, s35, {YT:#x}")
        P(f"s_add_u32 s35, s35, {X1T:#x}")
        for e in range(8):
            for hf in range(2):
                P(f"buffer_load_ushort v{40+8*hf+e}, v34, s[{WS}:{WS+3}], s38 offen offset:{64*hf} sc1")
                P(f"buffer_load_ushort v{56+8*hf+e}, v34, s[{WS}:{WS+3}], s35 offen offset:{64*hf} sc1")
            if e < 7:
                P(f"s_add_u32 s35, s35, 4096")
                P(f"s_add_u32 s38, s38, 4096")
        P("s_waitcnt vmcnt(32)")
        P("s_barrier")
        self.stamp("x1_handoff.2")
        for j in range(16):
            P(f"v_lshl_or_b32 v{16+j}, v{40+2*j+1}, 16, v{40+2*j}")

    GB = 32
    RN = 40
    GACC = 48
    GBUF = 72
    GT = 96

    def g1_setup(self, layer):
        P = self.P
        GB = self.GB
        if layer == 0:
            P("v_lshrrev_b32 v14, 4, v1")
            P("v_bfe_u32 v15, v1, 2, 2")
            P("v_lshl_add_u32 v96, v14, 3, v15")
            P("v_lshlrev_b32 v96, 7, v96")
            P("v_bfe_u32 v15, v1, 3, 1")
            P("v_bfe_u32 v14, v1, 4, 1")
            P("v_lshl_add_u32 v15, v14, 1, v15")
            P("v_lshl_add_u32 v96, v15, 5, v96")
            P("v_and_b32 v15, 3, v1")
            P("v_lshl_add_u32 v96, v15, 3, v96")
            for gam in range(4):
                P(f"s_add_u32 s35, s{sW}, {gam}")
                P(f"s_and_b32 s35, s35, 3")
                P(f"s_lshl_b32 s35, s35, 14")
                if XI:
                    P(f"s_add_u32 s35, s35, {XI}")
                P(f"v_add_u32 v{GB+2*gam}, s35, v96")
                P(f"v_xor_b32 v{GB+2*gam+1}, 32, v{GB+2*gam}")
        else:
            P("v_and_b32 v14, 15, v1")
            P(f"v_mul_u32_u24 v96, {XRS}, v14")
            P("v_lshrrev_b32 v14, 4, v1")
            P("v_lshl_add_u32 v96, v14, 4, v96")
            for gam in range(4):
                P(f"s_add_u32 s35, s{sW}, {gam}")
                P(f"s_and_b32 s35, s35, 3")
                P(f"s_lshl_b32 s35, s35, 8")
                if XI:
                    P(f"s_add_u32 s35, s35, {XI}")
                P(f"v_add_u32 v{GB+gam}, s35, v96")

    def g1_read(self, layer, hf, slot):
        GB, GBUF = self.GB, self.GBUF
        gam, qq = divmod(slot, 4)
        out = []
        for t in range(2):
            r = GBUF + 8 * (slot % 3) + 4 * t
            if layer == 0:
                out.append(f"ds_read_b64_tr_b16 {v(r,2)}, v{GB+2*gam+t} offset:{4096*qq}")
                out.append(f"ds_read_b64_tr_b16 {v(r+2,2)}, v{GB+2*gam+t} offset:{4096*qq+512}")
            else:
                out.append(f"ds_read_b128 {v(r,4)}, v{GB+gam} offset:{64*qq+(2*hf+t)*16*XRS}")
        return out

    def g1(self, layer, hf):
        P = self.P
        GB, RN, GACC, GBUF, GT = self.GB, self.RN, self.GACC, self.GBUF, self.GT
        if layer == 0 and hf == 1:
            for i in range(8):
                P(f"v_xor_b32 v{GB+i}, 64, v{GB+i}")
        for i in range(4):
            P(f"v_mov_b32 v{RN+4+i}, 0")
        P.emit(self.g1_read(layer, hf, 0))
        P.emit(self.g1_read(layer, hf, 1))
        for slot in range(16):
            if slot + 2 < 16:
                P.emit(self.g1_read(layer, hf, slot + 2))
            for t in range(2):
                b = GBUF + 8 * (slot % 3) + 4 * t
                for n in range(3):
                    acc = v(GACC + 12 * t + 4 * n, 4)
                    P(f"v_mfma_f32_16x16x32_bf16 {acc}, {W1(n,slot)}, {v(b,4)}, {'0' if slot == 0 else acc}")
                if slot < 4:
                    for j in range(4):
                        P(f"v_dot2_f32_bf16 v{RN+4+2*t}, v{b+j}, s{sONES}, v{RN+4+2*t}")
                        P(f"v_dot2_f32_bf16 v{RN+5+2*t}, v{b+j}, v{b+j}, v{RN+5+2*t}")
            if slot == 4:
                for sw in ("v_permlane32_swap_b32", "v_permlane16_swap_b32"):
                    for i in range(4):
                        P(f"v_mov_b32 v{GT+i}, v{RN+4+i}")
                    for i in range(4):
                        P(f"{sw} v{GT+i}, v{RN+4+i}")
                    for i in range(4):
                        P(f"v_add_f32 v{RN+4+i}, v{RN+4+i}, v{GT+i}")
                for t in range(2):
                    P(f"ds_write_b64 v9, {v(RN+4+2*t,2)} offset:{128*(2*hf+t)}")
        P("s_waitcnt lgkmcnt(0)")
        P("s_barrier")
        for t in range(2):
            for w in range(4):
                P(f"ds_read_b64 {v(GT+8*t+2*w,2)}, v10 offset:{512*w+128*(2*hf+t)}")
        for t in range(2):
            b = GT + 8 * t
            P(f"v_add_f32 v{b}, v{b}, v{b+2}")
            P(f"v_add_f32 v{b+1}, v{b+1}, v{b+3}")
            P(f"v_add_f32 v{b+4}, v{b+4}, v{b+6}")
            P(f"v_add_f32 v{b+5}, v{b+5}, v{b+7}")
            P(f"v_add_f32 v{b}, v{b}, v{b+4}")
            P(f"v_add_f32 v{b+1}, v{b+1}, v{b+5}")
            self.finish_stats(b, b + 1, RN + 2 * t, RN + 2 * t + 1)
        self.stamp("g1.1")
        P(f"s_lshl_b32 s35, s{sRB}, 1")
        P(f"s_add_u32 s35, s35, {hf}")
        P(f"s_mul_i32 s35, s35, 88")
        P(f"s_mul_i32 s36, s{sG}, 11")
        P(f"s_add_u32 s35, s35, s36")
        P(f"s_mul_i32 s36, s{sW}, 3")
        P(f"s_add_u32 s35, s35, s36")
        P(f"s_lshl_b32 s35, s35, 10")
        P(f"s_add_u32 s35, s35, {(H0, H1)[layer]:#x}")
        for n in range(3):
            Bc = GT + 8 * (n % 2)
            X = GT + 16
            U = GT + 24
            O = GT + 32 + 4 * (n % 2)
            P(f"ds_read_b128 {v(Bc,4)}, v12 offset:{128*n}")
            P(f"ds_read_b128 {v(Bc+4,4)}, v12 offset:{128*n+16}")
            E = [(t, e) for t in range(2) for e in range(4)]
            for t, e in E:
                P(f"v_fma_f32 v{X+4*t+e}, v{RN+2*t+1}, v{Bc+4+e}, v{Bc+e}")
            for t, e in E:
                P(f"v_fmac_f32 v{X+4*t+e}, v{RN+2*t}, v{GACC+12*t+4*n+e}")
            for i in range(8):
                P(f"v_mul_f32 v{U+i}, v{X+i}, v{X+i}")
            for i in range(8):
                P(f"v_fma_f32 v{U+i}, v{U+i}, v13, s{sC0}")
            for i in range(8):
                P(f"v_mul_f32 v{U+i}, v{X+i}, v{U+i}")
            for i in range(8):
                P(f"v_exp_f32 v{U+i}, v{U+i}")
            for i in range(8):
                P(f"v_add_f32 v{U+i}, 1.0, v{U+i}")
            for i in range(8):
                P(f"v_rcp_f32 v{U+i}, v{U+i}")
            for i in range(8):
                P(f"v_mul_f32 v{X+i}, v{X+i}, v{U+i}")
            for j in range(4):
                P(f"v_cvt_pk_bf16_f32 v{O+j}, v{X+2*j}, v{X+2*j+1}")
            P(f"v_permlane32_swap_b32 v{O}, v{O+2}")
            P(f"v_permlane32_swap_b32 v{O+1}, v{O+3}")
            if n == 2:
                L = self.lab("S")
                P(f"s_cmp_eq_u32 s{sW}, 3")
                P(f"s_cbranch_scc1 {L}")
                P(f"buffer_store_dwordx4 {v(O,4)}, v2, s[{WS}:{WS+3}], s35 offen offset:{1024*n} sc1 ;cond")
                P(f"{L}:")
            else:
                P(f"buffer_store_dwordx4 {v(O,4)}, v2, s[{WS}:{WS+3}], s35 offen offset:{1024*n} sc1")
        P(f"s_lshl_b32 s36, s{sRB}, 3")
        P(f"s_add_u32 s36, s36, s{sG}")
        P(f"s_lshl_b32 s36, s36, 2")
        P(f"s_add_u32 s36, s36, s{sW}")
        P(f"s_lshl_b32 s36, s36, 2")
        P(f"s_add_u32 s36, s36, {FH + (layer*2+hf)*4096:#x}")
        P("s_waitcnt vmcnt(0)")
        self.set_flag(36, 8)
        self.stamp("g1.2")

    def finish_stats(self, S_, Q_, dr, dn):
        P = self.P
        P(f"v_mul_f32 v{S_}, s{sINV}, v{S_}")
        P(f"v_mul_f32 v{Q_}, s{sINV}, v{Q_}")
        P(f"v_fma_f32 v{Q_}, -v{S_}, v{S_}, v{Q_}")
        P(f"v_max_f32 v{Q_}, 0, v{Q_}")
        P(f"v_add_f32 v{Q_}, 0x3727c5ac, v{Q_}")
        P(f"v_rsq_f32 v{dr}, v{Q_}")
        P(f"v_mul_f32 v{dn}, v{S_}, v{dr}")
        P(f"v_sub_f32 v{dn}, 0, v{dn}")

    HACC = 32
    HR = 64
    NR = 18
    HT = 136

    def g2(self, layer, hf):
        P = self.P
        HACC, HR, NR, HT = self.HACC, self.HR, self.NR, self.HT
        P(f"s_lshl_b32 s36, s{sRB}, 2")
        P(f"s_add_u32 s36, s36, s{sW}")
        P(f"s_lshl_b32 s36, s36, 5")
        P(f"s_add_u32 s36, s36, {FH + (layer*2+hf)*4096:#x}")
        P("v_and_b32 v14, 7, v1")
        P("v_lshlrev_b32 v14, 2, v14")
        self.poll(14, 36, HT, 1)
        self.stamp("g2.1")
        P(f"s_lshl_b32 s35, s{sRB}, 1")
        P(f"s_add_u32 s35, s35, {hf}")
        P(f"s_mul_i32 s35, s35, 88")
        P(f"s_mul_i32 s36, s{sW}, 22")
        P(f"s_add_u32 s35, s35, s36")
        P(f"s_lshl_b32 s35, s35, 10")
        P(f"s_add_u32 s35, s35, {(H0, H1)[layer]:#x}")

        def ld(k):
            o = []
            if k and k % 4 == 0:
                o.append("s_add_u32 s35, s35, 4096")
            o.append(f"buffer_load_dwordx4 {v(HR+4*(k%NR),4)}, v11, s[{WS}:{WS+3}], s35 offen offset:{1024*(k%4)} sc1")
            return o
        for k in range(NR):
            P.emit(ld(k))
        for k in range(22):
            for d in range(2):
                acc = v(HACC + 16 * d, 16)
                P(f"v_mfma_f32_32x32x16_bf16 {acc}, {W2(k,d)}, {v(HR+4*(k%NR),4)}, {'0' if k == 0 else acc}")
            if k + NR < 22:
                P.emit(ld(k + NR))
        self.stamp("ld.1")
        for d in range(2):
            for i in range(4):
                P(f"ds_write_b128 v3, {v(HACC+16*d+4*i,4)} offset:{hf*REDH+128*d+16*i}")
        P("s_waitcnt lgkmcnt(0)")
        P("s_barrier")

    def rows(self, layer, hf):
        P = self.P
        R = 64
        B = 96
        X = 104
        T = 112
        for w in range(4):
            for j in range(2):
                P(f"ds_read_b128 {v(R+8*w+4*j,4)}, v4 offset:{hf*REDH+w*REDW+16*j}")
        P("v_and_b32 v14, 7, v1")
        P("v_lshlrev_b32 v14, 5, v14")
        P(f"v_add_u32 v14, {B2L}, v14")
        for j in range(2):
            P(f"ds_read_b128 {v(B+4*j,4)}, v14 offset:{16*j}")
        XR = 24 + 4 * hf
        YR = 16 + 4 * hf
        for j in range(4):
            P(f"v_lshlrev_b32 v{X+2*j}, 16, v{XR+j}")
            P(f"v_and_b32 v{X+2*j+1}, s{sMASK}, v{XR+j}")
        for e in range(8):
            P(f"v_add_f32 v{R+e}, v{R+e}, v{R+8+e}")
        for e in range(8):
            P(f"v_add_f32 v{R+16+e}, v{R+16+e}, v{R+24+e}")
        for e in range(8):
            P(f"v_add_f32 v{X+e}, v{X+e}, v{B+e}")
        for e in range(8):
            P(f"v_add_f32 v{R+e}, v{R+e}, v{R+16+e}")
        for e in range(8):
            P(f"v_add_f32 v{X+e}, v{X+e}, v{R+e}")
        for j in range(4):
            P(f"v_cvt_pk_bf16_f32 v{XR+j}, v{X+2*j}, v{X+2*j+1}")
        P(f"s_lshl_b32 s35, s{sRB}, 16")
        P(f"s_lshl_b32 s36, s{sG}, 7")
        P(f"s_add_u32 s35, s35, s36")
        P(f"s_add_u32 s35, s35, {hf*32768}")
        if layer == 1:
            P(f"buffer_store_dwordx4 {v(XR,4)}, v7, s[{SA}:{SA+3}], s35 offen")
            self.stamp("rows.1")
            return
        P(f"v_mov_b32 v{T}, 0")
        P(f"v_mov_b32 v{T+1}, 0")
        for j in range(4):
            P(f"v_dot2_f32_bf16 v{T}, v{XR+j}, s{sONES}, v{T}")
            P(f"v_dot2_f32_bf16 v{T+1}, v{XR+j}, v{XR+j}, v{T+1}")

        def red8(x):
            for mod in ("quad_perm:[1,0,3,2]", "quad_perm:[2,3,0,1]", "row_half_mirror"):
                for i in range(2):
                    P(f"v_add_f32_dpp v{x+i}, v{x+i}, v{x+i} {mod} row_mask:0xf bank_mask:0xf")
        red8(T)
        P(f"s_lshl_b32 s36, s{sRB}, 1")
        P(f"s_add_u32 s36, s36, {hf}")
        P(f"s_lshl_b32 s36, s36, 11")
        P(f"s_add_u32 s36, s36, {ST2:#x}")
        P(f"s_lshl_b32 s37, s{sG}, 8")
        P(f"s_add_u32 s37, s37, s36")
        P("s_mov_b32 exec_lo, 0x01010101")
        P("s_mov_b32 exec_hi, 0x01010101")
        P(f"buffer_store_dwordx2 {v(T,2)}, v5, s[{WS}:{WS+3}], s37 offen sc1")
        P("s_mov_b64 exec, -1")
        for j in range(4):
            P(f"v_lshlrev_b32 v{X+2*j}, 16, v{XR+j}")
            P(f"v_and_b32 v{X+2*j+1}, s{sMASK}, v{XR+j}")
            P(f"v_lshlrev_b32 v{B+2*j}, 16, v{YR+j}")
            P(f"v_and_b32 v{B+2*j+1}, s{sMASK}, v{YR+j}")
        self.stamp("red8.1")
        self.poll(6, 36, T, 2)
        self.stamp("red8.2")
        red8(T)
        self.finish_stats(T, T + 1, T + 2, T + 3)
        for e in range(8):
            P(f"v_fma_f32 v{R+e}, v{X+e}, v{T+2}, v{T+3}")
        for e in range(8):
            P(f"v_fmac_f32 v{X+e}, v{R+e}, v{B+e}")
        for j in range(4):
            P(f"v_cvt_pk_bf16_f32 v{XR+j}, v{X+2*j}, v{X+2*j+1}")
        P(f"s_add_u32 s35, s35, {X3:#x}")
        P(f"buffer_store_dwordx4 {v(XR,4)}, v7, s[{WS}:{WS+3}], s35 offen sc1")
        P(f"s_lshl_b32 s36, s{sRB}, 2")
        P(f"s_add_u32 s36, s36, s{sW}")
        P(f"s_lshl_b32 s36, s36, 3")
        P(f"s_add_u32 s36, s36, s{sG}")
        P(f"s_lshl_b32 s36, s36, 2")
        P(f"s_add_u32 s36, s36, {FX3 + hf*4096:#x}")
        P("s_waitcnt vmcnt(0)")
        self.set_flag(36, 8)

    def x3_fetch(self, hf):
        P = self.P
        P(f"s_lshl_b32 s36, s{sRB}, 2")
        P(f"s_add_u32 s36, s36, s{sW}")
        P(f"s_lshl_b32 s36, s36, 5")
        P(f"s_add_u32 s36, s36, {FX3 + hf*4096:#x}")
        P("v_and_b32 v14, 7, v1")
        P("v_lshlrev_b32 v14, 2, v14")
        self.poll(14, 36, 136, 1)
        P(f"s_lshl_b32 s35, s{sRB}, 16")
        P(f"s_lshl_b32 s36, s{sW}, 13")
        P(f"s_add_u32 s35, s35, s36")
        P(f"s_add_u32 s35, s35, {X3 + hf*32768:#x}")
        P(f"s_mul_i32 s37, s{sW}, {8*XRS}")
        P(f"s_add_u32 s37, s37, {XI + 32*hf*XRS}")
        for k in range(8):
            P(f"s_add_u32 m0, s37, {k*XRS}")
            P(f"buffer_load_dwordx4 v11, s[{WS}:{WS+3}], s35 offen sc1 lds")
            if k < 7:
                P(f"s_add_u32 s35, s35, 1024")
```

```python
KVT = 0x000000
X0T = 0x200000
X1T = 0x400000
YT = 0x600000
X3 = 0x800000
W1F = 0xA00000
W2F = 0xC00000
H0 = 0xE00000
H1 = 0x1400000
ST0 = 0x1A00000
CLR = 0x1A10000
FX1 = CLR + 0x0
FH = CLR + 0x1000
FX3 = CLR + 0x5000
ST2 = CLR + 0x8000
CLR_BYTES = 0x28000
DBG = 0x1B00000
WS_BYTES = 0x1C00000

A_Q, A_K, A_V, A_SHIFT, A_SSMK, A_SSMD, B_X, B_W1, B_B1, B_W2, B_B2, D_OUT, D_DBG, D_WS = [8 * i for i in range(14)]
```

```python
import sys, os
sys.path.insert(0, os.path.dirname(os.path.abspath(__file__)))
from asmlib import *
from layout import *
import k0, k1

NAME = "interleave_layers__ssm_conv_h3__dense_activation_gelu__prompt"


def kd(name, vgpr, accum, sgpr):
    return f""".p2align 6
.amdhsa_kernel {name}
  .amdhsa_next_free_vgpr {vgpr}
  .amdhsa_next_free_sgpr {sgpr}
  .amdhsa_accum_offset {accum}
  .amdhsa_group_segment_fixed_size 0
  .amdhsa_kernarg_size 112
  .amdhsa_user_sgpr_count 2
  .amdhsa_user_sgpr_kernarg_segment_ptr 1
  .amdhsa_system_sgpr_workgroup_id_x 1
  .amdhsa_float_denorm_mode_32 3
.end_amdhsa_kernel
"""


def build(diag=False, extra_triv=0):
    ref = open(f"cdna_kernels/{NAME}.s.ref").read().split("\n")
    head = [l for l in ref if l.startswith(";") and "@launch" not in l and "Override launch" not in l and "grid=ceil" not in l]
    out = "\n".join(head) + "\n"
    out += f"; @launch kernel=prep_kernel grid=({k0.K0_GRID},1,1) block=(256,1,1) lds=0\n"
    for i in range(extra_triv):
        out += f"; @launch kernel=triv_kernel grid=(256,1,1) block=(256,1,1) lds=0\n"
    out += f"; @launch kernel=main_kernel grid=(256,1,1) block=(256,1,1) lds={k1.K1_LDS}\n"
    out += '.amdgcn_target "amdgcn-amd-amdhsa--gfx950"\n.text\n'
    P0 = Prog(); k0.gen_k0(P0)
    t0, n0 = P0.finalize()
    P1 = Prog(); k1.K1(P1, diag).gen()
    t1, n1 = P1.finalize()
    out += ".globl prep_kernel\n.p2align 8\n.type prep_kernel,@function\n" + t0
    out += ".globl main_kernel\n.p2align 8\n.type main_kernel,@function\n" + t1
    if extra_triv:
        out += ".globl triv_kernel\n.p2align 8\n.type triv_kernel,@function\ntriv_kernel:\n    s_endpgm\n"
    out += '.section .rodata,"a"\n'
    out += kd("prep_kernel", 128, 128, 64)
    out += kd("main_kernel", 512, 256, 102)
    if extra_triv:
        out += kd("triv_kernel", 8, 8, 16)
    sys.stderr.write(f"nops inserted: k0 {n0}, k1 {n1}; lines {len(out.splitlines())}\n")
    return out


if __name__ == "__main__":
    diag = "--diag" in sys.argv
    triv = 0
    for a_ in sys.argv:
        if a_.startswith("--triv="):
            triv = int(a_[7:])
    path = [a_ for a_ in sys.argv[1:] if not a_.startswith("--")]
    path = path[0] if path else f"cdna_kernels/{NAME}.s"
    open(path, "w").write(build(diag, triv))
```

```python
import sys
def make(name, body, reps, pre="", lds=100000, nv=256, na=256):
    s = f"""; @launch kernel=mb_kernel grid=(256,1,1) block=(256,1,1) lds={lds}
.amdgcn_target "amdgcn-amd-amdhsa--gfx950"
.text
.globl mb_kernel
.p2align 8
.type mb_kernel,@function
mb_kernel:
    s_load_dwordx2 s[4:5], s[0:1], 104
    v_lshrrev_b32 v1, 6, v0
    s_nop 1
    v_readfirstlane_b32 s16, v1
    v_and_b32 v1, 63, v0
    s_waitcnt lgkmcnt(0)
    s_and_b32 s5, s5, 0xffff
    s_mov_b32 s6, 0x1000000
    s_mov_b32 s7, 0x20000
{pre}
    s_mov_b32 s20, 0
    s_barrier
    s_memtime s[30:31]
    s_waitcnt lgkmcnt(0)
LOOP:
"""
    s += body
    s += """    s_waitcnt lgkmcnt(0) vmcnt(0)
    s_memtime s[32:33]
    s_waitcnt lgkmcnt(0)
    s_sub_u32 s34, s32, s30
    s_mov_b32 s30, s32
    s_cmp_eq_u32 s20, 0
    s_cselect_b32 s40, s34, s40
    s_cmp_eq_u32 s20, 1
    s_cselect_b32 s41, s34, s41
    s_cmp_eq_u32 s20, 2
    s_cselect_b32 s42, s34, s42
    s_add_u32 s20, s20, 1
    s_cmp_lt_u32 s20, 3
    s_cbranch_scc1 LOOP
    s_lshl_b32 s21, s2, 2
    s_add_u32 s21, s21, s16
    s_lshl_b32 s21, s21, 4
    v_mov_b32 v4, s40
    v_mov_b32 v5, s41
    v_mov_b32 v6, s42
    v_mov_b32 v7, %d
    v_mov_b32 v8, 0
    s_mov_b64 exec, 1
    buffer_store_dwordx4 v[4:7], v8, s[4:7], s21 offen
    s_endpgm
.section .rodata,"a"
.p2align 6
.amdhsa_kernel mb_kernel
  .amdhsa_next_free_vgpr 512
  .amdhsa_next_free_sgpr 64
  .amdhsa_accum_offset 256
  .amdhsa_group_segment_fixed_size 0
  .amdhsa_kernarg_size 112
  .amdhsa_user_sgpr_count 2
  .amdhsa_user_sgpr_kernarg_segment_ptr 1
  .amdhsa_system_sgpr_workgroup_id_x 1
.end_amdhsa_kernel
""" % reps
    open(name + ".s", "w").write(s)
```
